```python
import torch

def _softmax(x, axis=-1):
    return torch.softmax(x, dim=axis)

def _gelu(x):
    return torch.nn.functional.gelu(x, approximate='tanh')

def _silu(x):
    return torch.nn.functional.silu(x)

def _sigmoid(x):
    return torch.sigmoid(x)

def _layernorm(x, axis=-1, eps=1e-05):
    m = x.mean(dim=axis, keepdim=True)
    v = x.var(dim=axis, keepdim=True, unbiased=False)
    return (x - m) / torch.sqrt(v + eps)

def _scatter_add(tgt, idx, src, axis=0):
    return tgt.clone().index_add_(axis, idx, src)

def _segment_sum(src, seg, n):
    out = torch.zeros((n,) + src.shape[1:], dtype=src.dtype)
    return out.index_add_(0, seg, src)

def _pad(x, pw):
    flat = tuple((v for pair in reversed(pw) for v in pair))
    return torch.nn.functional.pad(x, flat)
kernel_name = 'standalone__video_video_swin__vision'

def setup_inputs():

    _w = lambda a: (lambda t: t.to(torch.bfloat16) if t.is_floating_point() else t)(torch.as_tensor(a))
    T = 4
    H = W = 224 // 8 * 8
    C, win = (96, 8)
    return {'x': _w((lambda *s: torch.randn(*s, dtype=torch.bfloat16) * 0.1)(1, T, H, W, C)), 'wqkv_t': _w((lambda *s: torch.randn(*s, dtype=torch.bfloat16) * 0.1)(C, 3 * C)), 'wo_t': _w((lambda *s: torch.randn(*s, dtype=torch.bfloat16) * 0.1)(C, C)), 'wqkv_s': _w((lambda *s: torch.randn(*s, dtype=torch.bfloat16) * 0.1)(C, 3 * C)), 'wo_s': _w((lambda *s: torch.randn(*s, dtype=torch.bfloat16) * 0.8)(C, C))}

def reference(x, wqkv_t, wo_t, wqkv_s, wo_s):
    B, T, H, W, C = x.shape
    win = 8
    scale = C ** (-0.5)
    h = _layernorm(x, axis=-1)
    ht = (lambda x, *d: x.permute(*d))(h, 0, 2, 3, 1, 4).reshape(B * H * W, T, C)
    qkv = ht @ wqkv_t
    q, k, v = (qkv[..., :C].clone(), qkv[..., C:2 * C].clone(), qkv[..., 2 * C:].clone())
    p = _softmax(torch.einsum('btc,bsc->bts', q, k) * scale, axis=-1)
    ot = torch.einsum('bts,bsc->btc', p, v) @ wo_t
    ot = (lambda x, *d: x.permute(*d))(ot.reshape(B, H, W, T, C), 0, 3, 1, 2, 4)
    x = x + ot
    h = _layernorm(x, axis=-1)
    nh, nw = (H // win, W // win)
    hs = h.reshape(B * T, nh, win, nw, win, C)
    hw = (lambda x, *d: x.permute(*d))(hs, 0, 1, 3, 2, 4, 5).reshape(B * T * nh * nw, win * win, C)
    qkv = hw @ wqkv_s
    q, k, v = (qkv[..., :C].clone(), qkv[..., C:2 * C].clone(), qkv[..., 2 * C:].clone())
    p = _softmax(torch.einsum('bqc,bkc->bqk', q, k) * scale, axis=-1)
    os = torch.einsum('bqk,bkc->bqc', p, v) @ wo_s
    os = (lambda x, *d: x.permute(*d))(os.reshape(B * T, nh, nw, win, win, C), 0, 1, 3, 2, 4, 5)
    os = os.reshape(B, T, H, W, C)
    return x + os
```

```python
import sys

def V(n, cnt=1):
    return [('v', n + k) for k in range(cnt)]
def S(n, cnt=1):
    return [('s', n + k) for k in range(cnt)]

def vr(n, cnt=1):
    return f"v{n}" if cnt == 1 else f"v[{n}:{n+cnt-1}]"
def sr(n, cnt=1):
    return f"s{n}" if cnt == 1 else f"s[{n}:{n+cnt-1}]"

class I:
    __slots__ = ('text', 'kind', 'w', 'r', 'c', 'ab', 'idx', 'prio', 'succ', 'npred', 'ready', 'note', 'order')
    def __init__(self, text, kind, w=(), r=(), c=(), ab=()):
        self.text = text; self.kind = kind
        self.w = frozenset(w); self.r = frozenset(r) | frozenset(c) | frozenset(ab)
        self.c = frozenset(c); self.ab = frozenset(ab)

VALUK = ('valu', 'trans', 'dot', 'perm')
ISSUE = {'valu': 4, 'trans': 8, 'dot': 4, 'perm': 4, 'mfma': 8, 'dsr': 4, 'dsw': 8, 'vld': 4, 'vst': 8, 'salu': 4}

def lat(a, b, typ):
    if typ == 'raw':
        if a.kind == 'mfma':
            if b.kind == 'mfma' and a.w == b.c and not (a.w & b.ab):
                return 32
            return 32 + 40
        if a.kind == 'dsr': return 120
        if a.kind == 'vld': return 800
        if a.kind == 'trans': return 12
        if a.kind == 'dot': return 4 if (b.kind == 'dot') else 16
        if a.kind in VALUK:
            if b.kind == 'mfma' or b.kind == 'perm': return 12
            return 4
        return 4
    if typ == 'waw':
        if a.kind == 'mfma':
            return 32 if b.kind == 'mfma' else 72
        if a.kind == 'dsr': return 120
        if a.kind == 'vld': return 800
        return 4
    if a.kind == 'mfma' and (a.c & b.w): return 40
    return 4

def schedule(insts, enable=True):
    if not enable:
        return list(insts)
    n = len(insts)
    lastw = {}; readers = {}
    for k, x in enumerate(insts):
        x.idx = k; x.succ = []; x.npred = 0; x.ready = 0
    edges = {}
    def add(a, b, typ):
        if a is b: return
        l = lat(a, b, typ)
        key = (a.idx, b.idx)
        if key in edges:
            if edges[key] < l: edges[key] = l
        else:
            edges[key] = l
    lastmem = {}
    for x in insts:
        for r_ in x.r:
            if r_ in lastw: add(lastw[r_], x, 'raw')
        for w_ in x.w:
            if w_ in lastw: add(lastw[w_], x, 'waw')
            for rd in readers.get(w_, ()): add(rd, x, 'war')
        for r_ in x.r:
            readers.setdefault(r_, []).append(x)
        for w_ in x.w:
            lastw[w_] = x; readers[w_] = []
        if x.kind in ('vst', 'dsw'):
            if x.kind in lastmem: add(lastmem[x.kind], x, 'war')
            lastmem[x.kind] = x
    for (a, b), l in edges.items():
        insts[a].succ.append((insts[b], l)); insts[b].npred += 1
    for x in reversed(insts):
        x.prio = ISSUE[x.kind] + max([l + y.prio for (y, l) in x.succ], default=0)
    out = []; t = 0; pipe_free = 0
    cand = [x for x in insts if x.npred == 0]
    while cand:
        def rt(x): return max(x.ready, pipe_free) if x.kind == 'mfma' else x.ready
        avail = [x for x in cand if rt(x) <= t]
        if not avail:
            t = min(rt(x) for x in cand); continue
        best = max(avail, key=lambda x: (x.kind == 'mfma', x.prio, -x.idx))
        cand.remove(best); out.append(best)
        for (y, l) in best.succ:
            y.ready = max(y.ready, t + l); y.npred -= 1
            if y.npred == 0: cand.append(y)
        if best.kind == 'mfma': pipe_free = t + 32
        t += ISSUE[best.kind]
    assert len(out) == n
    schedule.last_cycles = t
    return out

def need_ws(a, b):
    n = 0
    bv = b.kind in VALUK
    if a.kind in VALUK:
        if b.kind == 'mfma' and (a.w & b.r): n = max(n, 2)
        if b.kind == 'perm' and (a.w & b.r): n = max(n, 2)
        if a.kind == 'trans' and bv and (a.w & b.r): n = max(n, 1)
        if a.kind == 'dot' and (a.w & (b.r | b.w)):
            if b.kind == 'dot' and not (a.w & b.ab): pass
            else: n = max(n, 3)
        sw = {r for r in a.w if r[0] != 'v'}
        if sw & b.r:
            if bv: n = max(n, 2)
            if b.kind in ('vld', 'vst'): n = max(n, 5)
        if 'readlane' in b.text or 'readfirstlane' in b.text:
            if a.w & b.r: n = max(n, 1)
    if a.kind == 'mfma':
        if b.kind == 'mfma':
            if a.w & b.ab: n = max(n, 12)
            if (a.w & b.c) and a.w != b.c: n = max(n, 10)
            if (a.w & b.w) and a.w != b.c: n = max(n, 12)
        else:
            if a.w & (b.r | b.w): n = max(n, 12)
            if bv and (a.c & b.w): n = max(n, 7)
    if a.kind == 'vst' and (a.r & b.w): n = max(n, 2)
    return n

class Emitter:
    def __init__(self):
        self.lines = []
        self.hist = []
        self.lgkm = []
        self.vm = []
    def raw(self, text, flush=False):
        self.lines.append("    " + text)
        self.hist.append(None)
    def label(self, name):
        self.lines.append(name + ":")
    def comment(self, s):
        self.lines.append("    ; " + s)
    def fence(self, nops=13):
        k = nops
        while k > 0:
            m = min(k, 16)
            self.lines.append(f"    s_nop {m-1}")
            self.hist.extend([None] * m); k -= m
    def waitall(self, vm=True, lgkm=True):
        parts = []
        if vm: parts.append("vmcnt(0)"); self.vm = []
        if lgkm: parts.append("lgkmcnt(0)"); self.lgkm = []
        self.raw("s_waitcnt " + " ".join(parts))
    def emit(self, x):
        need_l = None; need_v = None
        for k, y in enumerate(self.lgkm):
            if y.kind == 'dsr' and (y.w & (x.r | x.w)): need_l = len(self.lgkm) - 1 - k
        for k, y in enumerate(self.vm):
            if y.kind == 'vld' and (y.w & (x.r | x.w)): need_v = len(self.vm) - 1 - k
        if need_l is not None or need_v is not None:
            parts = []
            if need_v is not None:
                assert need_v <= 63
                parts.append(f"vmcnt({need_v})"); self.vm = self.vm[len(self.vm) - need_v:] if need_v else []
            if need_l is not None:
                nl = min(need_l, 15)
                parts.append(f"lgkmcnt({nl})"); self.lgkm = self.lgkm[len(self.lgkm) - nl:] if nl else []
            self.raw("s_waitcnt " + " ".join(parts))
        dist = 0; need = 0
        for y in reversed(self.hist[-16:]):
            if y is not None:
                nn = need_ws(y, x) - dist
                if nn > need: need = nn
            dist += 1
        if need > 0:
            self.lines.append(f"    s_nop {need-1}")
            self.hist.extend([None] * need)
        self.lines.append("    " + x.text)
        self.hist.append(x)
        if x.kind in ('dsr', 'dsw'): self.lgkm.append(x)
        if x.kind in ('vld', 'vst'): self.vm.append(x)
    def region(self, insts, sched=True):
        out = schedule(insts, sched)
        for x in out: self.emit(x)
        return getattr(schedule, 'last_cycles', 0) if sched else 0
```

```python
import sys, struct, math
from asmlib import *

SCHED = True
USE_DOT = True
for a in sys.argv[1:]:
    if a == 'nosched': SCHED = False
    if a == 'nodot': USE_DOT = False

NAME = "standalone__video_video_swin__vision"
FRAME = 9633792; ROW = 43008; PIX = 192
XBYTES = 38535168
LDS_W = 73728
LDS_X = 36864
LDS_CNT = LDS_W + 2 * LDS_X
LDS_TOTAL = LDS_CNT + 64

def f32bits(x): return struct.unpack('<I', struct.pack('<f', x))[0]

vLANE = 1; vT = 2; vS = 3; vXW = 4; vXR = 5; vFR = 6; vONES = 7; vCNT = 8; vONE = 9; vTMP = 10; vFR2 = 0
R_X = 16; R_H = 64; R_A = 112; R_B = 160; R_F = 224; NFR = 6; R_T = 248
def X(u): return R_X + 24 * u
def H(u): return R_H + 24 * u
def QP(u): return R_A + 24 * u
def PB(k): return R_B + 16 * k

sXS = 8
sOS = 12
sMR = 16
sVH = 24
sEX = 26
sC = 28; sI96 = 29; sEPS = 30; sHI = 31
sWV = 32; sG = 33; sW = 34; sIDX = 35; sTGT = 36; sT0 = 37; sT1 = 38; sT2 = 39
sOF = 40
sIT = 44
sKA = 48
sWQ = 60
sWO = 64
sCOL = 68; sMT = 69; sII = 70; sT3 = 71; sT4 = 72

E = Emitter()

def valu(text, w, r, kind='valu'):
    return I(text, kind, w=w, r=r)
def mfma(d, a, b, c=None):
    cs = "0" if c is None else vr(c, 16)
    return I(f"v_mfma_f32_32x32x16_bf16 {vr(d,16)}, {vr(a,4)}, {vr(b,4)}, {cs}", 'mfma',
             w=V(d, 16), c=() if c is None else V(c, 16), ab=V(a, 4) + V(b, 4))
def pk(d, a, b):
    return valu(f"v_cvt_pk_bf16_f32 {vr(d)}, {vr(a)}, {vr(b)}", V(d), V(a) + V(b))
def ulo(d, a): return valu(f"v_lshlrev_b32 {vr(d)}, 16, {vr(a)}", V(d), V(a))
def uhi(d, a): return valu(f"v_and_b32 {vr(d)}, {sr(sHI)}, {vr(a)}", V(d), V(a))

fragctr = [0]
def frag(L, mt, i, s):
    r = R_F + 4 * (fragctr[0] % NFR); fragctr[0] += 1
    off = ((mt * 3 + i) * 6 + s) * 1024
    base = vFR
    if mt >= 2: off -= 36864; base = vFR2
    L.append(I(f"ds_read_b128 {vr(r,4)}, {vr(base)} offset:{off}", 'dsr', w=V(r, 4), r=V(base)))
    return r

def xhalf_sum(L, a, t, op='add'):
    L.append(valu(f"v_mov_b32 {vr(t)}, {vr(a)}", V(t), V(a)))
    L.append(I(f"v_permlane32_swap_b32 {vr(a)}, {vr(t)}", 'perm', w=V(a) + V(t), r=V(a) + V(t)))
    L.append(valu(f"v_{op}_f32 {vr(a)}, {vr(a)}, {vr(t)}", V(a), V(a) + V(t)))

def bfround(L, a):
    L.append(pk(a, a, a)); L.append(ulo(a, a))

def LN(L, u, T):
    x = X(u); h = H(u)
    s1, s1b, s2, s2b, t1, rr, nb = T[0:7]
    tp = T[7:]
    if USE_DOT:
        for j in range(24):
            a1 = (s1, s1b)[j & 1]; a2 = (s2, s2b)[j & 1]
            c1 = "0" if j < 2 else vr(a1); c2 = "0" if j < 2 else vr(a2)
            L.append(I(f"v_dot2_f32_bf16 {vr(a1)}, {vr(x+j)}, {vr(vONES)}, {c1}", 'dot', w=V(a1),
                       ab=V(x + j) + V(vONES), c=() if j < 2 else V(a1)))
            L.append(I(f"v_dot2_f32_bf16 {vr(a2)}, {vr(x+j)}, {vr(x+j)}, {c2}", 'dot', w=V(a2),
                       ab=V(x + j), c=() if j < 2 else V(a2)))
    else:
        np_ = (len(tp) // 2)
        for j in range(24):
            lo = tp[(2 * j) % (2 * np_)]; hi = tp[(2 * j + 1) % (2 * np_)]
            L.append(ulo(lo, x + j)); L.append(uhi(hi, x + j))
            if j == 0:
                L.append(valu(f"v_mov_b32 {vr(s1)}, {vr(lo)}", V(s1), V(lo)))
                L.append(valu(f"v_mov_b32 {vr(s1b)}, {vr(hi)}", V(s1b), V(hi)))
                L.append(valu(f"v_mul_f32 {vr(s2)}, {vr(lo)}, {vr(lo)}", V(s2), V(lo)))
                L.append(valu(f"v_mul_f32 {vr(s2b)}, {vr(hi)}, {vr(hi)}", V(s2b), V(hi)))
            else:
                L.append(valu(f"v_add_f32 {vr(s1)}, {vr(s1)}, {vr(lo)}", V(s1), V(s1) + V(lo)))
                L.append(valu(f"v_add_f32 {vr(s1b)}, {vr(s1b)}, {vr(hi)}", V(s1b), V(s1b) + V(hi)))
                L.append(valu(f"v_fmac_f32 {vr(s2)}, {vr(lo)}, {vr(lo)}", V(s2), V(s2) + V(lo)))
                L.append(valu(f"v_fmac_f32 {vr(s2b)}, {vr(hi)}, {vr(hi)}", V(s2b), V(s2b) + V(hi)))
    L.append(valu(f"v_add_f32 {vr(s1)}, {vr(s1)}, {vr(s1b)}", V(s1), V(s1) + V(s1b)))
    L.append(valu(f"v_add_f32 {vr(s2)}, {vr(s2)}, {vr(s2b)}", V(s2), V(s2) + V(s2b)))
    xhalf_sum(L, s1, t1); xhalf_sum(L, s2, s2b)
    L.append(valu(f"v_mul_f32 {vr(s1)}, {sr(sI96)}, {vr(s1)}", V(s1), V(s1)))
    L.append(valu(f"v_mul_f32 {vr(s2)}, {sr(sI96)}, {vr(s2)}", V(s2), V(s2)))
    L.append(valu(f"v_fma_f32 {vr(s2)}, -{vr(s1)}, {vr(s1)}, {vr(s2)}", V(s2), V(s1) + V(s2)))
    L.append(valu(f"v_max_f32 {vr(s2)}, 0, {vr(s2)}", V(s2), V(s2)))
    bfround(L, s1); bfround(L, s2)
    L.append(valu(f"v_add_f32 {vr(s2)}, {sr(sEPS)}, {vr(s2)}", V(s2), V(s2)))
    bfround(L, s2)
    L.append(valu(f"v_sqrt_f32 {vr(s2)}, {vr(s2)}", V(s2), V(s2), 'trans'))
    bfround(L, s2)
    L.append(valu(f"v_rcp_f32 {vr(rr)}, {vr(s2)}", V(rr), V(s2), 'trans'))
    L.append(valu(f"v_mul_f32 {vr(nb)}, -{vr(s1)}, {vr(rr)}", V(nb), V(s1) + V(rr)))
    np_ = len(tp) // 2
    for j in range(24):
        lo = tp[(2 * j) % (2 * np_)]; hi = tp[(2 * j + 1) % (2 * np_)]
        L.append(ulo(lo, x + j)); L.append(uhi(hi, x + j))
        L.append(valu(f"v_fma_f32 {vr(lo)}, {vr(lo)}, {vr(rr)}, {vr(nb)}", V(lo), V(lo) + V(rr) + V(nb)))
        L.append(valu(f"v_fma_f32 {vr(hi)}, {vr(hi)}, {vr(rr)}, {vr(nb)}", V(hi), V(hi) + V(rr) + V(nb)))
        L.append(pk(h + j, lo, hi))

def Qstage(L, mt, u, i, acc):
    for s in range(6):
        f = frag(L, mt, i, s)
        L.append(mfma(acc, f, H(u) + 4 * s, None if s == 0 else acc))
    for j in range(8):
        L.append(pk(QP(u) + 8 * i + j, acc + 2 * j, acc + 2 * j + 1))

def Sstage(L, ku, qu, acc):
    for s in range(6):
        L.append(mfma(acc, H(ku) + 4 * s, QP(qu) + 4 * s, None if s == 0 else acc))

def Vstage(L, mt, u, i, acc, vp):
    for s in range(6):
        f = frag(L, mt, i, s)
        L.append(mfma(acc, H(u) + 4 * s, f, None if s == 0 else acc))
    for j in range(8):
        L.append(pk(vp + j, acc + 2 * j, acc + 2 * j + 1))

def Oinit(L, u, i, o):
    for j in range(8):
        L.append(ulo(o + 2 * j, X(u) + 8 * i + j)); L.append(uhi(o + 2 * j + 1, X(u) + 8 * i + j))
def Opack(L, u, i, o):
    for j in range(8):
        L.append(pk(X(u) + 8 * i + j, o + 2 * j, o + 2 * j + 1))

def softmax_t(L, sa, T):
    e = T[0:4]; mx, sm = T[4], T[5]; p01, p23 = T[6], T[7]
    for k in range(4):
        L.append(valu(f"v_cndmask_b32 {vr(e[k])}, {vr(sa+k)}, {vr(sa+4+k)}, {sr(sMR+2,2)}", V(e[k]), V(sa + k) + V(sa + 4 + k)))
        L.append(valu(f"v_cndmask_b32 {vr(e[k])}, {vr(e[k])}, {vr(sa+8+k)}, {sr(sMR+4,2)}", V(e[k]), V(e[k]) + V(sa + 8 + k)))
        L.append(valu(f"v_cndmask_b32 {vr(e[k])}, {vr(e[k])}, {vr(sa+12+k)}, {sr(sMR+6,2)}", V(e[k]), V(e[k]) + V(sa + 12 + k)))
    L.append(valu(f"v_max3_f32 {vr(mx)}, {vr(e[0])}, {vr(e[1])}, {vr(e[2])}", V(mx), V(e[0]) + V(e[1]) + V(e[2])))
    L.append(valu(f"v_max_f32 {vr(mx)}, {vr(mx)}, {vr(e[3])}", V(mx), V(mx) + V(e[3])))
    L.append(valu(f"v_mul_f32 {vr(mx)}, {sr(sC)}, {vr(mx)}", V(mx), V(mx)))
    for k in range(4):
        L.append(valu(f"v_fma_f32 {vr(e[k])}, {vr(e[k])}, {sr(sC)}, -{vr(mx)}", V(e[k]), V(e[k]) + V(mx)))
        L.append(valu(f"v_exp_f32 {vr(e[k])}, {vr(e[k])}", V(e[k]), V(e[k]), 'trans'))
    L.append(valu(f"v_add_f32 {vr(sm)}, {vr(e[0])}, {vr(e[1])}", V(sm), V(e[0]) + V(e[1])))
    L.append(valu(f"v_add_f32 {vr(mx)}, {vr(e[2])}, {vr(e[3])}", V(mx), V(e[2]) + V(e[3])))
    L.append(valu(f"v_add_f32 {vr(sm)}, {vr(sm)}, {vr(mx)}", V(sm), V(sm) + V(mx)))
    L.append(valu(f"v_rcp_f32 {vr(sm)}, {vr(sm)}", V(sm), V(sm), 'trans'))
    L.append(valu(f"v_cndmask_b32 {vr(sm)}, 0, {vr(sm)}, {sr(sVH,2)}", V(sm), V(sm)))
    for k in range(4):
        L.append(valu(f"v_mul_f32 {vr(e[k])}, {vr(e[k])}, {vr(sm)}", V(e[k]), V(e[k]) + V(sm)))
    L.append(pk(p01, e[0], e[1])); L.append(pk(p23, e[2], e[3]))
    for R in range(4):
        L.append(valu(f"v_cndmask_b32 {vr(sa+2*R)}, 0, {vr(p01)}, {sr(sMR+2*R,2)}", V(sa + 2 * R), V(p01)))
        L.append(valu(f"v_cndmask_b32 {vr(sa+2*R+1)}, 0, {vr(p23)}, {sr(sMR+2*R,2)}", V(sa + 2 * R + 1), V(p23)))

def softmax_s(L, sa, T):
    m = T[0:4]; t1 = T[4]; sm = T[5:9]
    for k in range(4):
        b = sa + 8 * k
        L.append(valu(f"v_max3_f32 {vr(m[k])}, {vr(b)}, {vr(b+1)}, {vr(b+2)}", V(m[k]), V(b, 3)))
        L.append(valu(f"v_max3_f32 {vr(m[k])}, {vr(m[k])}, {vr(b+3)}, {vr(b+4)}", V(m[k]), V(m[k]) + V(b + 3, 2)))
        L.append(valu(f"v_max3_f32 {vr(m[k])}, {vr(m[k])}, {vr(b+5)}, {vr(b+6)}", V(m[k]), V(m[k]) + V(b + 5, 2)))
    L.append(valu(f"v_max3_f32 {vr(m[0])}, {vr(m[0])}, {vr(sa+7)}, {vr(sa+15)}", V(m[0]), V(m[0]) + V(sa + 7) + V(sa + 15)))
    L.append(valu(f"v_max3_f32 {vr(m[1])}, {vr(m[1])}, {vr(sa+23)}, {vr(sa+31)}", V(m[1]), V(m[1]) + V(sa + 23) + V(sa + 31)))
    L.append(valu(f"v_max3_f32 {vr(m[0])}, {vr(m[0])}, {vr(m[2])}, {vr(m[3])}", V(m[0]), V(m[0]) + V(m[2]) + V(m[3])))
    L.append(valu(f"v_max_f32 {vr(m[0])}, {vr(m[0])}, {vr(m[1])}", V(m[0]), V(m[0]) + V(m[1])))
    xhalf_sum(L, m[0], t1, 'max')
    L.append(valu(f"v_mul_f32 {vr(m[0])}, {sr(sC)}, {vr(m[0])}", V(m[0]), V(m[0])))
    for k in range(32):
        L.append(valu(f"v_fma_f32 {vr(sa+k)}, {vr(sa+k)}, {sr(sC)}, -{vr(m[0])}", V(sa + k), V(sa + k) + V(m[0])))
        L.append(valu(f"v_exp_f32 {vr(sa+k)}, {vr(sa+k)}", V(sa + k), V(sa + k), 'trans'))
        a = sm[k & 3]
        if k < 4:
            pass
        elif k < 8:
            L.append(valu(f"v_add_f32 {vr(a)}, {vr(sa+k-4)}, {vr(sa+k)}", V(a), V(sa + k - 4) + V(sa + k)))
        else:
            L.append(valu(f"v_add_f32 {vr(a)}, {vr(a)}, {vr(sa+k)}", V(a), V(a) + V(sa + k)))
    L.append(valu(f"v_add_f32 {vr(sm[0])}, {vr(sm[0])}, {vr(sm[1])}", V(sm[0]), V(sm[0]) + V(sm[1])))
    L.append(valu(f"v_add_f32 {vr(sm[2])}, {vr(sm[2])}, {vr(sm[3])}", V(sm[2]), V(sm[2]) + V(sm[3])))
    L.append(valu(f"v_add_f32 {vr(sm[0])}, {vr(sm[0])}, {vr(sm[2])}", V(sm[0]), V(sm[0]) + V(sm[2])))
    xhalf_sum(L, sm[0], t1)
    L.append(valu(f"v_rcp_f32 {vr(sm[0])}, {vr(sm[0])}", V(sm[0]), V(sm[0]), 'trans'))
    for j in range(16):
        L.append(valu(f"v_mul_f32 {vr(sa+2*j)}, {vr(sa+2*j)}, {vr(sm[0])}", V(sa + 2 * j), V(sa + 2 * j) + V(sm[0])))
        L.append(valu(f"v_mul_f32 {vr(sa+2*j+1)}, {vr(sa+2*j+1)}, {vr(sm[0])}", V(sa + 2 * j + 1), V(sa + 2 * j + 1) + V(sm[0])))
        L.append(pk(sa + j, sa + 2 * j, sa + 2 * j + 1))

LNT = [list(range(PB(0), PB(0) + 16)) + list(range(R_T, R_T + 8)), list(range(R_A + 24, R_A + 48))]
VACC = [PB(1), PB(3)]; VPK = [R_A + 32, R_A + 40]; OB = [R_A, R_A + 16]

def phase(temporal):
    L = []
    mtM = 0 if temporal else 2; mtU = mtM + 1
    for u in range(2): LN(L, u, LNT[u])
    pool = [PB(1), PB(2), PB(3)]
    k = 0
    for u in range(2):
        for i in range(3):
            Qstage(L, mtM, u, i, pool[k % 3]); k += 1
        if temporal:
            Sstage(L, u, u, PB(2 * u))
    if temporal:
        for u in range(2):
            softmax_t(L, PB(2 * u), list(range(QP(u), QP(u) + 24)))
    else:
        for qu in range(2):
            for ku in range(2):
                Sstage(L, ku, qu, PB(2 * qu + ku))
        for qu in range(2):
            softmax_s(L, PB(2 * qu), list(range(QP(qu), QP(qu) + 24)))
    for i in range(3):
        for u in range(2):
            Vstage(L, mtU, u, i, VACC[u], VPK[u])
        for u in range(2):
            Oinit(L, u, i, OB[u])
            if temporal:
                for kk in range(2):
                    L.append(mfma(OB[u], VPK[u] + 4 * kk, PB(2 * u) + 4 * kk, OB[u]))
            else:
                for ku in range(2):
                    for kk in range(2):
                        L.append(mfma(OB[u], VPK[ku] + 4 * kk, PB(2 * u) + 8 * ku + 4 * kk, OB[u]))
            Opack(L, u, i, OB[u])
    return L

R = E.raw
hdr = f"""; fused video-swin block: temporal attention + 8x8 window attention (generated by gen/gen.py)
; @launch grid=(256,1,1) block=(512,1,1) lds={LDS_TOTAL}
.amdgcn_target "amdgcn-amd-amdhsa--gfx950"
.text
.globl {NAME}_kernel
.p2align 8
.type {NAME}_kernel,@function
{NAME}_kernel:"""
E.lines.append(hdr)
R("s_cmp_ge_u32 s2, 256")
R("s_cbranch_scc1 L_end")
R(f"s_load_dwordx8 {sr(sKA,8)}, s[0:1], 0")
R(f"s_load_dwordx4 {sr(sKA+8,4)}, s[0:1], 32")
R(f"v_and_b32 {vr(vLANE)}, 63, v0")
R(f"v_lshrrev_b32 {vr(vTMP)}, 6, v0")
R("s_nop 0")
R(f"v_readfirstlane_b32 {sr(sWV)}, {vr(vTMP)}")
R("s_nop 3")
R(f"s_lshr_b32 {sr(sG)}, {sr(sWV)}, 2")
R(f"s_and_b32 {sr(sW)}, {sr(sWV)}, 3")
R(f"s_mov_b32 {sr(sC)}, 0x{f32bits(96**-0.5 * math.log2(math.e)):08x}")
R(f"s_mov_b32 {sr(sI96)}, 0x{f32bits(1/96):08x}")
R(f"s_mov_b32 {sr(sEPS)}, 0x{f32bits(1e-5):08x}")
R(f"s_mov_b32 {sr(sHI)}, 0xffff0000")
for Rr in range(4):
    R(f"s_mov_b32 {sr(sMR+2*Rr)}, 0x{0xFF << (8*Rr):08x}")
    R(f"s_mov_b32 {sr(sMR+2*Rr+1)}, 0x{0xFF << (8*Rr):08x}")
R(f"s_mov_b32 {sr(sVH)}, 0x0f0f0f0f")
R(f"s_mov_b32 {sr(sVH+1)}, 0xf0f0f0f0")
R(f"s_lshl_b32 {sr(sT0)}, 0x11111111, {sr(sW)}")
R(f"s_not_b32 {sr(sEX)}, {sr(sT0)}")
R(f"s_mov_b32 {sr(sEX+1)}, {sr(sEX)}")
R(f"v_mov_b32 {vr(vONES)}, 0x3f803f80")
R(f"v_mov_b32 {vr(vONE)}, 1")
R(f"v_lshrrev_b32 v11, 5, {vr(vLANE)}")
R(f"v_bfe_u32 v12, {vr(vLANE)}, 2, 3")
R(f"v_and_b32 v13, 3, {vr(vLANE)}")
R("v_mul_u32_u24 v14, 96, v11")
R("s_movk_i32 s3, 192")
R("v_mad_u32_u24 v14, v12, s3, v14")
R(f"s_mov_b32 s3, {FRAME}")
R(f"v_mul_lo_u32 {vr(vT)}, v13, s3")
R(f"v_add_u32 {vr(vT)}, {vr(vT)}, v14")
R(f"s_mov_b32 s3, {2*ROW}")
R(f"v_mul_lo_u32 {vr(vS)}, v13, s3")
R(f"v_add_u32 {vr(vS)}, {vr(vS)}, v14")
R(f"v_lshlrev_b32 {vr(vFR)}, 4, {vr(vLANE)}")
R(f"v_add_u32 {vr(vFR2)}, 36864, {vr(vFR)}")
R(f"s_mul_i32 {sr(sT0)}, {sr(sG)}, {LDS_X}")
R(f"s_add_u32 {sr(sT0)}, {sr(sT0)}, {LDS_W}")
R("s_movk_i32 s3, 384")
R("v_mul_u32_u24 v14, s3, v11")
R("v_mad_u32_u24 v14, v12, 48, v14")
R(f"v_add_u32 v14, {sr(sT0)}, v14")
R(f"s_sub_u32 {sr(sT1)}, {sr(sW)}, 1")
R(f"v_sub_u32 v15, {sr(sT1)}, v13")
R("v_and_b32 v15, 3, v15")
R("v_lshl_add_u32 v15, v15, 4, v14")
R("s_movk_i32 s3, 9216")
R(f"v_mad_u32_u24 {vr(vXW)}, v13, s3, v15")
R(f"s_add_u32 {sr(sT1)}, {sr(sW)}, 1")
R(f"v_subrev_u32 v15, {sr(sT1)}, v13")
R("v_and_b32 v15, 3, v15")
R("v_lshl_add_u32 v15, v15, 4, v14")
R(f"s_mul_i32 {sr(sT1)}, {sr(sW)}, 9216")
R(f"v_add_u32 {vr(vXR)}, {sr(sT1)}, v15")
R(f"s_lshl_b32 {sr(sT1)}, {sr(sG)}, 3")
R(f"s_add_u32 {sr(sT1)}, {sr(sT1)}, {LDS_CNT}")
R(f"v_mov_b32 {vr(vCNT)}, {sr(sT1)}")
R("s_waitcnt lgkmcnt(0)")
R(f"s_mov_b32 {sr(sXS)}, {sr(sKA)}")
R(f"s_and_b32 {sr(sXS+1)}, {sr(sKA+1)}, 0xffff")
R(f"s_mov_b32 {sr(sXS+2)}, {XBYTES}")
R(f"s_mov_b32 {sr(sXS+3)}, 0x00020000")
R(f"s_mov_b32 {sr(sOS)}, {sr(sKA+10)}")
R(f"s_and_b32 {sr(sOS+1)}, {sr(sKA+11)}, 0xffff")
R(f"s_mov_b32 {sr(sOS+2)}, {XBYTES}")
R(f"s_mov_b32 {sr(sOS+3)}, 0x00020000")
R(f"s_lshl_b32 {sr(sIDX)}, {sr(sG)}, 8")
R(f"s_add_u32 {sr(sIDX)}, {sr(sIDX)}, s2")
R(f"s_mov_b32 {sr(sIT)}, 0")

def window_offsets():
    R(f"s_mul_hi_u32 {sr(sT0)}, {sr(sIDX)}, {(2**32 + 27)//28}")
    R(f"s_mul_i32 {sr(sT1)}, {sr(sT0)}, 28")
    R(f"s_sub_u32 {sr(sT1)}, {sr(sIDX)}, {sr(sT1)}")
    R(f"s_mul_i32 {sr(sT0)}, {sr(sT0)}, {8*ROW}")
    R(f"s_mul_i32 {sr(sT1)}, {sr(sT1)}, {8*PIX}")
    R(f"s_add_u32 {sr(sT0)}, {sr(sT0)}, {sr(sT1)}")
    R(f"s_mul_i32 {sr(sT1)}, {sr(sW)}, {2*ROW}")
    R(f"s_add_u32 {sr(sOF)}, {sr(sT0)}, {sr(sT1)}")
    R(f"s_add_u32 {sr(sOF+1)}, {sr(sOF)}, {ROW}")
    R(f"s_mul_i32 {sr(sT1)}, {sr(sW)}, {FRAME}")
    R(f"s_add_u32 {sr(sOF+2)}, {sr(sT0)}, {sr(sT1)}")
    R(f"s_add_u32 {sr(sOF+3)}, {sr(sOF+2)}, {ROW}")

def xloads():
    for u in range(2):
        for s in range(6):
            E.emit(I(f"buffer_load_dwordx4 {vr(X(u)+4*s,4)}, {vr(vT)}, {sr(sXS,4)}, {sr(sOF+u)} offen offset:{16*s}",
                     'vld', w=V(X(u) + 4 * s, 4), r=V(vT)))

window_offsets()
xloads()

PA = 64; PBv = 136; PU = 160; PACC = 208
R(f"v_and_b32 v12, 31, {vr(vLANE)}")
R("v_bfe_u32 v13, v12, 2, 1")
R("v_mul_u32_u24 v13, 48, v13")
R("v_and_b32 v14, 3, v12")
R("v_add_u32 v13, v13, v14")
R("v_lshrrev_b32 v14, 3, v12")
R("v_lshl_add_u32 v13, v14, 2, v13")
R("s_movk_i32 s3, 576")
R("v_mul_u32_u24 v14, s3, v13")
R("v_lshl_add_u32 v14, v11, 4, v14")
R("s_movk_i32 s3, 1536")
R("v_mul_u32_u24 v15, s3, v11")
R("v_lshl_add_u32 v15, v13, 1, v15")
R(f"s_mov_b32 {sr(sCOL)}, {sr(sWV)}")
E.label("L_prep")
R(f"s_mul_hi_u32 {sr(sMT)}, {sr(sCOL)}, {(2**32+2)//3}")
R(f"s_mul_i32 {sr(sT0)}, {sr(sMT)}, 3")
R(f"s_sub_u32 {sr(sII)}, {sr(sCOL)}, {sr(sT0)}")
R(f"s_cmp_ge_u32 {sr(sMT)}, 2")
R(f"s_cselect_b32 {sr(sWQ)}, {sr(sKA+6)}, {sr(sKA+2)}")
R(f"s_cselect_b32 {sr(sWQ+1)}, {sr(sKA+7)}, {sr(sKA+3)}")
R(f"s_cselect_b32 {sr(sWO)}, {sr(sKA+8)}, {sr(sKA+4)}")
R(f"s_cselect_b32 {sr(sWO+1)}, {sr(sKA+9)}, {sr(sKA+5)}")
R(f"s_and_b32 {sr(sWQ+1)}, {sr(sWQ+1)}, 0xffff")
R(f"s_and_b32 {sr(sWO+1)}, {sr(sWO+1)}, 0xffff")
R(f"s_mov_b32 {sr(sWQ+2)}, 55296")
R(f"s_mov_b32 {sr(sWQ+3)}, 0x00020000")
R(f"s_mov_b32 {sr(sWO+2)}, 18432")
R(f"s_mov_b32 {sr(sWO+3)}, 0x00020000")
R(f"s_and_b32 {sr(sT0)}, {sr(sMT)}, 1")
R(f"s_mul_i32 {sr(sT1)}, {sr(sT0)}, 384")
for ip in range(3):
    R(f"s_add_u32 {sr(sT2)}, {sr(sT1)}, {ip*9216}")
    for s in range(6):
        R(f"buffer_load_dwordx4 {vr(PA+(ip*6+s)*4,4)}, v14, {sr(sWQ,4)}, {sr(sT2)} offen offset:{32*s}")
R(f"s_cmp_eq_u32 {sr(sT0)}, 1")
R("s_cbranch_scc1 L_prepU")
R(f"s_mul_i32 {sr(sT2)}, {sr(sII)}, 9216")
R(f"s_add_u32 {sr(sT2)}, {sr(sT2)}, 192")
for s in range(6):
    R(f"buffer_load_dwordx4 {vr(PBv+4*s,4)}, v14, {sr(sWQ,4)}, {sr(sT2)} offen offset:{32*s}")
R("s_waitcnt vmcnt(0)")
R("s_branch L_prepM")
E.label("L_prepU")
R(f"s_lshl_b32 {sr(sT3)}, {sr(sII)}, 5")
for s in range(6):
    R(f"s_add_u32 {sr(sT2)}, {sr(sT3)}, {s*3072}")
    for j in range(8):
        R(f"buffer_load_ushort {vr(PU+8*s+j)}, v15, {sr(sWO,4)}, {sr(sT2)} offen offset:{192*j}")
R("s_waitcnt vmcnt(0)")
for s in range(6):
    for j in range(4):
        R(f"v_lshl_or_b32 {vr(PBv+4*s+j)}, {vr(PU+8*s+2*j+1)}, 16, {vr(PU+8*s+2*j)}")
E.label("L_prepM")
R("s_nop 2")
E.hist = []; E.vm = []
for ip in range(3):
    for s in range(6):
        E.emit(mfma(PACC + 16 * ip, PA + (ip * 6 + s) * 4, PBv + 4 * s, None if s == 0 else PACC + 16 * ip))
R(f"s_mul_i32 {sr(sT2)}, {sr(sCOL)}, 6144")
R(f"v_add_u32 v12, {sr(sT2)}, {vr(vFR)}")
for ip in range(3):
    for j in range(8):
        E.emit(pk(PU + 8 * ip + j, PACC + 16 * ip + 2 * j, PACC + 16 * ip + 2 * j + 1))
    for hh in range(2):
        E.emit(I(f"ds_write_b128 v12, {vr(PU+8*ip+4*hh,4)} offset:{(2*ip+hh)*1024}", 'dsw', r=V(12) + V(PU + 8 * ip + 4 * hh, 4)))
R(f"s_add_u32 {sr(sCOL)}, {sr(sCOL)}, 8")
R(f"s_cmp_lt_u32 {sr(sCOL)}, 12")
R("s_cbranch_scc1 L_prep")
R(f"v_mov_b32 v12, 0")
R(f"v_mov_b32 v13, 0")
R(f"ds_write_b64 {vr(vCNT)}, v[12:13]")
R("s_waitcnt lgkmcnt(0)")
R("s_barrier")
E.lgkm = []
E.fence()

def spin(label, off, tgt):
    E.label(label)
    R(f"ds_read_b32 {vr(vTMP)}, {vr(vCNT)} offset:{off}")
    R("s_waitcnt lgkmcnt(0)")
    R(f"v_readfirstlane_b32 {sr(sT0)}, {vr(vTMP)}")
    R("s_nop 3")
    R(f"s_cmp_ge_u32 {sr(sT0)}, {sr(tgt)}")
    R(f"s_cbranch_scc1 {label}_go")
    R("s_sleep 1")
    R(f"s_branch {label}")
    E.label(label + "_go")
def signal(off):
    R("s_mov_b64 exec, 1")
    R(f"ds_add_u32 {vr(vCNT)}, {vr(vONE)} offset:{off}")
    R("s_mov_b64 exec, -1")

E.label("L_loop")
R("s_waitcnt vmcnt(0)")
E.vm = []; E.lgkm = []
cyc_t = E.region(phase(True), SCHED)
E.fence()
R(f"s_lshl_b32 {sr(sTGT)}, {sr(sIT)}, 2")
R("s_waitcnt lgkmcnt(0)")
spin("L_spinR", 4, sTGT)
R(f"s_mov_b64 exec, {sr(sEX,2)}")
for u in range(2):
    for s in range(6):
        R(f"ds_write_b128 {vr(vXW)}, {vr(X(u)+4*s,4)} offset:{u*4608+s*768}")
R("s_mov_b64 exec, -1")
R("s_waitcnt lgkmcnt(0)")
signal(0)
R(f"s_add_u32 {sr(sTGT)}, {sr(sTGT)}, 4")
spin("L_spinW", 0, sTGT)
R(f"s_mov_b64 exec, {sr(sEX,2)}")
for u in range(2):
    for s in range(6):
        R(f"ds_read_b128 {vr(X(u)+4*s,4)}, {vr(vXR)} offset:{u*4608+s*768}")
R("s_mov_b64 exec, -1")
R("s_waitcnt lgkmcnt(0)")
signal(4)
E.lgkm = []
Ls = phase(False)
for u in range(2):
    for s in range(6):
        Ls.append(I(f"buffer_store_dwordx4 {vr(X(u)+4*s,4)}, {vr(vS)}, {sr(sOS,4)}, {sr(sOF+2+u)} offen offset:{16*s}",
                    'vst', r=V(X(u) + 4 * s, 4) + V(vS)))
cyc_s = E.region(Ls, SCHED)
E.fence()
R(f"s_add_u32 {sr(sIDX)}, {sr(sIDX)}, 512")
R(f"s_add_u32 {sr(sIT)}, {sr(sIT)}, 1")
R(f"s_cmp_ge_u32 {sr(sIDX)}, 784")
R("s_cbranch_scc1 L_end")
window_offsets()
xloads()
R("s_branch L_loop")
E.label("L_end")
R("s_endpgm")
E.lines.append(f""".section .rodata,"a"
.p2align 6
.amdhsa_kernel {NAME}_kernel
  .amdhsa_next_free_vgpr 256
  .amdhsa_next_free_sgpr 80
  .amdhsa_accum_offset 256
  .amdhsa_group_segment_fixed_size 0
  .amdhsa_kernarg_size 64
  .amdhsa_user_sgpr_count 2
  .amdhsa_user_sgpr_kernarg_segment_ptr 1
  .amdhsa_system_sgpr_workgroup_id_x 1
.end_amdhsa_kernel""")
out = sys.argv[1] if len(sys.argv) > 1 and sys.argv[1].endswith('.s') else f"cdna_kernels/{NAME}.s"
open(out, 'w').write("\n".join(E.lines) + "\n")
print("est cycles T,S:", cyc_t, cyc_s, "lines", len(E.lines), file=sys.stderr)
```

```python
import sys

def V(n, cnt=1):
    return [('v', n + k) for k in range(cnt)]
def S(n, cnt=1):
    return [('s', n + k) for k in range(cnt)]

def vr(n, cnt=1):
    return f"v{n}" if cnt == 1 else f"v[{n}:{n+cnt-1}]"
def sr(n, cnt=1):
    return f"s{n}" if cnt == 1 else f"s[{n}:{n+cnt-1}]"

class I:
    __slots__ = ('text', 'kind', 'w', 'r', 'c', 'ab', 'idx', 'prio', 'succ', 'npred', 'ready', 'note', 'order')
    def __init__(self, text, kind, w=(), r=(), c=(), ab=()):
        self.text = text; self.kind = kind
        self.w = frozenset(w); self.r = frozenset(r) | frozenset(c) | frozenset(ab)
        self.c = frozenset(c); self.ab = frozenset(ab)

VALUK = ('valu', 'trans', 'dot', 'perm')
ISSUE = {'valu': 4, 'trans': 8, 'dot': 4, 'perm': 4, 'mfma': 8, 'dsr': 4, 'dsw': 8, 'vld': 4, 'vst': 8, 'salu': 4}

def lat(a, b, typ):
    if typ == 'raw':
        if a.kind == 'mfma':
            if b.kind == 'mfma' and a.w == b.c and not (a.w & b.ab):
                return 32
            return 32 + 40
        if a.kind == 'dsr': return 120
        if a.kind == 'vld': return 800
        if a.kind == 'trans': return 12
        if a.kind == 'dot': return 4 if (b.kind == 'dot') else 16
        if a.kind in VALUK:
            if b.kind == 'mfma' or b.kind == 'perm': return 12
            return 4
        return 4
    if typ == 'waw':
        if a.kind == 'mfma':
            return 32 if b.kind == 'mfma' else 72
        if a.kind == 'dsr': return 120
        if a.kind == 'vld': return 800
        return 4
    if a.kind == 'mfma' and (a.c & b.w): return 40
    return 4

def schedule(insts, enable=True):
    if not enable:
        return list(insts)
    n = len(insts)
    lastw = {}; readers = {}
    for k, x in enumerate(insts):
        x.idx = k; x.succ = []; x.npred = 0; x.ready = 0
    edges = {}
    def add(a, b, typ, reg=('v', 0)):
        if a is b: return
        l = lat(a, b, typ) if reg[0] in 'vs' else 4
        key = (a.idx, b.idx)
        if key in edges:
            if edges[key] < l: edges[key] = l
        else:
            edges[key] = l
    lastmem = {}
    for x in insts:
        for r_ in x.r:
            if r_ in lastw: add(lastw[r_], x, 'raw', r_)
        for w_ in x.w:
            if w_ in lastw: add(lastw[w_], x, 'waw', w_)
            for rd in readers.get(w_, ()): add(rd, x, 'war', w_)
        for r_ in x.r:
            readers.setdefault(r_, []).append(x)
        for w_ in x.w:
            lastw[w_] = x; readers[w_] = []
        if x.kind in ('vst', 'dsw'):
            if x.kind in lastmem: add(lastmem[x.kind], x, 'war')
            lastmem[x.kind] = x
    for (a, b), l in edges.items():
        insts[a].succ.append((insts[b], l)); insts[b].npred += 1
    for x in reversed(insts):
        x.prio = ISSUE[x.kind] + max([l + y.prio for (y, l) in x.succ], default=0)
    out = []; t = 0; pipe_free = 0
    cand = [x for x in insts if x.npred == 0]
    while cand:
        def rt(x): return max(x.ready, pipe_free) if x.kind == 'mfma' else x.ready
        avail = [x for x in cand if rt(x) <= t]
        if not avail:
            t = min(rt(x) for x in cand); continue
        best = max(avail, key=lambda x: (x.kind == 'mfma', x.prio, -x.idx))
        cand.remove(best); out.append(best)
        for (y, l) in best.succ:
            y.ready = max(y.ready, t + l); y.npred -= 1
            if y.npred == 0: cand.append(y)
        if best.kind == 'mfma': pipe_free = t + 32
        t += ISSUE[best.kind]
    assert len(out) == n
    schedule.last_cycles = t
    return out

def need_ws(a, b):
    n = 0
    bv = b.kind in VALUK
    if a.kind in VALUK:
        if b.kind == 'mfma' and (a.w & b.r): n = max(n, 2)
        if b.kind == 'perm' and (a.w & b.r): n = max(n, 2)
        if a.kind == 'trans' and bv and (a.w & b.r): n = max(n, 1)
        if a.kind == 'dot' and (a.w & (b.r | b.w)):
            if b.kind == 'dot' and not (a.w & b.ab): pass
            else: n = max(n, 3)
        sw = {r for r in a.w if r[0] != 'v'}
        if sw & b.r:
            if bv: n = max(n, 2)
            if b.kind in ('vld', 'vst'): n = max(n, 5)
        if 'readlane' in b.text or 'readfirstlane' in b.text:
            if a.w & b.r: n = max(n, 1)
    if a.kind == 'mfma':
        if b.kind == 'mfma':
            if a.w & b.ab: n = max(n, 12)
            if (a.w & b.c) and a.w != b.c: n = max(n, 10)
            if (a.w & b.w) and a.w != b.c: n = max(n, 12)
        else:
            if a.w & (b.r | b.w): n = max(n, 12)
            if bv and (a.c & b.w): n = max(n, 7)
    if a.kind == 'vst' and (a.r & b.w): n = max(n, 2)
    return n

class Emitter:
    def __init__(self):
        self.lines = []
        self.hist = []
        self.lgkm = []
        self.vm = []
    def raw(self, text, flush=False):
        self.lines.append("    " + text)
        self.hist.append(None)
    def label(self, name):
        self.lines.append(name + ":")
    def comment(self, s):
        self.lines.append("    ; " + s)
    def fence(self, nops=13):
        k = nops
        while k > 0:
            m = min(k, 16)
            self.lines.append(f"    s_nop {m-1}")
            self.hist.extend([None] * m); k -= m
    def waitall(self, vm=True, lgkm=True):
        parts = []
        if vm: parts.append("vmcnt(0)"); self.vm = []
        if lgkm: parts.append("lgkmcnt(0)"); self.lgkm = []
        self.raw("s_waitcnt " + " ".join(parts))
    def emit(self, x):
        need_l = None; need_v = None
        xr = {q for q in (x.r | x.w) if q[0] == 'v'}
        for k, y in enumerate(self.lgkm):
            if y.kind == 'dsr' and (y.w & xr): need_l = len(self.lgkm) - 1 - k
        for k, y in enumerate(self.vm):
            if y.kind == 'vld' and (y.w & xr): need_v = len(self.vm) - 1 - k
        if need_l is not None or need_v is not None:
            parts = []
            if need_v is not None:
                assert need_v <= 63
                parts.append(f"vmcnt({need_v})"); self.vm = self.vm[len(self.vm) - need_v:] if need_v else []
            if need_l is not None:
                nl = min(need_l, 15)
                parts.append(f"lgkmcnt({nl})"); self.lgkm = self.lgkm[len(self.lgkm) - nl:] if nl else []
            self.raw("s_waitcnt " + " ".join(parts))
        dist = 0; need = 0
        for y in reversed(self.hist[-16:]):
            if y is not None:
                nn = need_ws(y, x) - dist
                if nn > need: need = nn
            dist += 1
        if need > 0:
            self.lines.append(f"    s_nop {need-1}")
            self.hist.extend([None] * need)
        self.lines.append("    " + x.text)
        self.hist.append(x)
        if x.kind in ('dsr', 'dsw'): self.lgkm.append(x)
        if x.kind in ('vld', 'vst'): self.vm.append(x)
    def region(self, insts, sched=True):
        out = schedule(insts, sched)
        for x in out: self.emit(x)
        return getattr(schedule, 'last_cycles', 0) if sched else 0
```

```python
import sys, struct, math
from asmlib import *

FL = set(sys.argv[1:])
SCHED = 'nosched' not in FL
LN_MFMA = 'lnmfma' in FL

NAME = "standalone__video_video_swin__vision"
FRAME = 9633792; ROW = 43008; PIX = 192
XBYTES = 38535168
LDS_W = 73728
LDS_X = 36864
LDS_CNT = LDS_W + 2 * LDS_X
LDS_TOTAL = LDS_CNT + 64
FPAD = 1552

def f32bits(x): return struct.unpack('<I', struct.pack('<f', x))[0]

vFR2 = 0; vLANE = 1; vLF = 2; vXW = 4; vXR = 5; vFR = 6; vGT1 = 7; vCNT = 8; vONE = 9; vTMP = 10
vGS1 = 11; vLA0 = 12; vLA1 = 13
R_ID = 16; R_X = 24; R_H = 72; R_A = 120; R_B = 168; R_F = 232; NFR = 6
def X(u): return R_X + 24 * u
def H(u): return R_H + 24 * u
def QP(u): return R_A + 24 * u
def PB(k): return R_B + 16 * k

sXS = 8; sOS = 12; sMR = 16; sVH = 24; sEX = 26
sC = 28; sI96 = 29; sEPS = 30; sHI = 31
sWV = 32; sG = 33; sW = 34; sIDX = 35; sTGT = 36; sT0 = 37; sT1 = 38; sT2 = 39
sLD = 40
sST = 52
sKA = 64
sWQ = 76
sWO = 80
sMT = 84; sHF = 85; sT3 = 86; sT4 = 87; sIT = 88; sNB = 89
sDBG = 90

E = Emitter()
R = E.raw

def valu(text, w, r, kind='valu'):
    return I(text, kind, w=w, r=r)
def mfma(d, a, b, c=None):
    cs = "0" if c is None else vr(c, 16)
    return I(f"v_mfma_f32_32x32x16_bf16 {vr(d,16)}, {vr(a,4)}, {vr(b,4)}, {cs}", 'mfma',
             w=V(d, 16), c=() if c is None else V(c, 16), ab=V(a, 4) + V(b, 4))
def pk(d, a, b):
    return valu(f"v_cvt_pk_bf16_f32 {vr(d)}, {vr(a)}, {vr(b)}", V(d), V(a) + V(b))
def ulo(d, a): return valu(f"v_lshlrev_b32 {vr(d)}, 16, {vr(a)}", V(d), V(a))
def uhi(d, a): return valu(f"v_and_b32 {vr(d)}, {sr(sHI)}, {vr(a)}", V(d), V(a))

fragctr = [0]
def frag(L, mt, i, s):
    r = R_F + 4 * (fragctr[0] % NFR); fragctr[0] += 1
    off = ((mt * 3 + i) * 6 + s) * 1024
    base = vFR
    if mt >= 2: off -= 36864; base = vFR2
    L.append(I(f"ds_read_b128 {vr(r,4)}, {vr(base)} offset:{off}", 'dsr', w=V(r, 4), r=V(base)))
    return r

def xhalf_sum(L, a, t, op='add'):
    L.append(valu(f"v_mov_b32 {vr(t)}, {vr(a)}", V(t), V(a)))
    L.append(I(f"v_permlane32_swap_b32 {vr(a)}, {vr(t)}", 'perm', w=V(a) + V(t), r=V(a) + V(t)))
    L.append(valu(f"v_{op}_f32 {vr(a)}, {vr(a)}, {vr(t)}", V(a), V(a) + V(t)))

def bfround(L, a):
    L.append(pk(a, a, a)); L.append(ulo(a, a))

def unpack_mfma(L, u, i, o):
    L.append(mfma(o, R_ID, X(u) + 8 * i, None))
    L.append(mfma(o, R_ID + 4, X(u) + 8 * i + 4, o))

def LN(L, u, U, T):
    x = X(u); h = H(u)
    s1, s1b, s2, s2b, t1, rr, nb = T[0:7]
    if LN_MFMA:
        for i in range(3): unpack_mfma(L, u, i, U + 16 * i)
    for j in range(24):
        lo = U + 2 * j; hi = lo + 1
        if not LN_MFMA:
            L.append(ulo(lo, x + j)); L.append(uhi(hi, x + j))
        if j == 1:
            L.append(valu(f"v_add_f32 {vr(s1)}, {vr(U)}, {vr(lo)}", V(s1), V(U) + V(lo)))
            L.append(valu(f"v_add_f32 {vr(s1b)}, {vr(U+1)}, {vr(hi)}", V(s1b), V(U + 1) + V(hi)))
        elif j > 1:
            L.append(valu(f"v_add_f32 {vr(s1)}, {vr(s1)}, {vr(lo)}", V(s1), V(s1) + V(lo)))
            L.append(valu(f"v_add_f32 {vr(s1b)}, {vr(s1b)}, {vr(hi)}", V(s1b), V(s1b) + V(hi)))
        if j == 0:
            L.append(valu(f"v_mul_f32 {vr(s2)}, {vr(lo)}, {vr(lo)}", V(s2), V(lo)))
            L.append(valu(f"v_mul_f32 {vr(s2b)}, {vr(hi)}, {vr(hi)}", V(s2b), V(hi)))
        else:
            L.append(valu(f"v_fmac_f32 {vr(s2)}, {vr(lo)}, {vr(lo)}", V(s2), V(s2) + V(lo)))
            L.append(valu(f"v_fmac_f32 {vr(s2b)}, {vr(hi)}, {vr(hi)}", V(s2b), V(s2b) + V(hi)))
    L.append(valu(f"v_add_f32 {vr(s1)}, {vr(s1)}, {vr(s1b)}", V(s1), V(s1) + V(s1b)))
    L.append(valu(f"v_add_f32 {vr(s2)}, {vr(s2)}, {vr(s2b)}", V(s2), V(s2) + V(s2b)))
    xhalf_sum(L, s1, t1); xhalf_sum(L, s2, s2b)
    L.append(valu(f"v_mul_f32 {vr(s1)}, {sr(sI96)}, {vr(s1)}", V(s1), V(s1)))
    L.append(valu(f"v_mul_f32 {vr(s2)}, {sr(sI96)}, {vr(s2)}", V(s2), V(s2)))
    L.append(valu(f"v_fma_f32 {vr(s2)}, -{vr(s1)}, {vr(s1)}, {vr(s2)}", V(s2), V(s1) + V(s2)))
    L.append(valu(f"v_max_f32 {vr(s2)}, 0, {vr(s2)}", V(s2), V(s2)))
    bfround(L, s1); bfround(L, s2)
    L.append(valu(f"v_add_f32 {vr(s2)}, {sr(sEPS)}, {vr(s2)}", V(s2), V(s2)))
    bfround(L, s2)
    L.append(valu(f"v_sqrt_f32 {vr(s2)}, {vr(s2)}", V(s2), V(s2), 'trans'))
    bfround(L, s2)
    L.append(valu(f"v_rcp_f32 {vr(rr)}, {vr(s2)}", V(rr), V(s2), 'trans'))
    L.append(valu(f"v_mul_f32 {vr(nb)}, -{vr(s1)}, {vr(rr)}", V(nb), V(s1) + V(rr)))
    for j in range(24):
        lo = U + 2 * j; hi = lo + 1
        L.append(valu(f"v_fma_f32 {vr(lo)}, {vr(lo)}, {vr(rr)}, {vr(nb)}", V(lo), V(lo) + V(rr) + V(nb)))
        L.append(valu(f"v_fma_f32 {vr(hi)}, {vr(hi)}, {vr(rr)}, {vr(nb)}", V(hi), V(hi) + V(rr) + V(nb)))
        L.append(pk(h + j, lo, hi))

def Qstage(L, mt, u, i, acc):
    for s in range(6):
        f = frag(L, mt, i, s)
        L.append(mfma(acc, f, H(u) + 4 * s, None if s == 0 else acc))
    for j in range(8):
        L.append(pk(QP(u) + 8 * i + j, acc + 2 * j, acc + 2 * j + 1))

def Sstage(L, ku, qu, acc):
    for s in range(6):
        L.append(mfma(acc, H(ku) + 4 * s, QP(qu) + 4 * s, None if s == 0 else acc))

def Vstage(L, mt, u, i, acc, vp):
    for s in range(6):
        f = frag(L, mt, i, s)
        L.append(mfma(acc, H(u) + 4 * s, f, None if s == 0 else acc))
    for j in range(8):
        L.append(pk(vp + j, acc + 2 * j, acc + 2 * j + 1))

def Opack(L, u, i, o):
    for j in range(8):
        L.append(pk(X(u) + 8 * i + j, o + 2 * j, o + 2 * j + 1))

def softmax_t(L, sa, T):
    e = T[0:4]; mx, sm = T[4], T[5]; p01, p23 = T[6], T[7]
    for k in range(4):
        L.append(valu(f"v_cndmask_b32 {vr(e[k])}, {vr(sa+k)}, {vr(sa+4+k)}, {sr(sMR+2,2)}", V(e[k]), V(sa + k) + V(sa + 4 + k)))
        L.append(valu(f"v_cndmask_b32 {vr(e[k])}, {vr(e[k])}, {vr(sa+8+k)}, {sr(sMR+4,2)}", V(e[k]), V(e[k]) + V(sa + 8 + k)))
        L.append(valu(f"v_cndmask_b32 {vr(e[k])}, {vr(e[k])}, {vr(sa+12+k)}, {sr(sMR+6,2)}", V(e[k]), V(e[k]) + V(sa + 12 + k)))
    L.append(valu(f"v_max3_f32 {vr(mx)}, {vr(e[0])}, {vr(e[1])}, {vr(e[2])}", V(mx), V(e[0]) + V(e[1]) + V(e[2])))
    L.append(valu(f"v_max_f32 {vr(mx)}, {vr(mx)}, {vr(e[3])}", V(mx), V(mx) + V(e[3])))
    L.append(valu(f"v_mul_f32 {vr(mx)}, {sr(sC)}, {vr(mx)}", V(mx), V(mx)))
    for k in range(4):
        L.append(valu(f"v_fma_f32 {vr(e[k])}, {vr(e[k])}, {sr(sC)}, -{vr(mx)}", V(e[k]), V(e[k]) + V(mx)))
        L.append(valu(f"v_exp_f32 {vr(e[k])}, {vr(e[k])}", V(e[k]), V(e[k]), 'trans'))
    L.append(valu(f"v_add_f32 {vr(sm)}, {vr(e[0])}, {vr(e[1])}", V(sm), V(e[0]) + V(e[1])))
    L.append(valu(f"v_add_f32 {vr(mx)}, {vr(e[2])}, {vr(e[3])}", V(mx), V(e[2]) + V(e[3])))
    L.append(valu(f"v_add_f32 {vr(sm)}, {vr(sm)}, {vr(mx)}", V(sm), V(sm) + V(mx)))
    L.append(valu(f"v_rcp_f32 {vr(sm)}, {vr(sm)}", V(sm), V(sm), 'trans'))
    L.append(valu(f"v_cndmask_b32 {vr(sm)}, 0, {vr(sm)}, {sr(sVH,2)}", V(sm), V(sm)))
    for k in range(4):
        L.append(valu(f"v_mul_f32 {vr(e[k])}, {vr(e[k])}, {vr(sm)}", V(e[k]), V(e[k]) + V(sm)))
    L.append(pk(p01, e[0], e[1])); L.append(pk(p23, e[2], e[3]))
    for Rr in range(4):
        L.append(valu(f"v_cndmask_b32 {vr(sa+2*Rr)}, 0, {vr(p01)}, {sr(sMR+2*Rr,2)}", V(sa + 2 * Rr), V(p01)))
        L.append(valu(f"v_cndmask_b32 {vr(sa+2*Rr+1)}, 0, {vr(p23)}, {sr(sMR+2*Rr,2)}", V(sa + 2 * Rr + 1), V(p23)))

def softmax_s(L, sa, T):
    m = T[0:4]; t1 = T[4]; sm = T[5:9]
    for k in range(4):
        b = sa + 8 * k
        L.append(valu(f"v_max3_f32 {vr(m[k])}, {vr(b)}, {vr(b+1)}, {vr(b+2)}", V(m[k]), V(b, 3)))
        L.append(valu(f"v_max3_f32 {vr(m[k])}, {vr(m[k])}, {vr(b+3)}, {vr(b+4)}", V(m[k]), V(m[k]) + V(b + 3, 2)))
        L.append(valu(f"v_max3_f32 {vr(m[k])}, {vr(m[k])}, {vr(b+5)}, {vr(b+6)}", V(m[k]), V(m[k]) + V(b + 5, 2)))
    L.append(valu(f"v_max3_f32 {vr(m[0])}, {vr(m[0])}, {vr(sa+7)}, {vr(sa+15)}", V(m[0]), V(m[0]) + V(sa + 7) + V(sa + 15)))
    L.append(valu(f"v_max3_f32 {vr(m[1])}, {vr(m[1])}, {vr(sa+23)}, {vr(sa+31)}", V(m[1]), V(m[1]) + V(sa + 23) + V(sa + 31)))
    L.append(valu(f"v_max3_f32 {vr(m[0])}, {vr(m[0])}, {vr(m[2])}, {vr(m[3])}", V(m[0]), V(m[0]) + V(m[2]) + V(m[3])))
    L.append(valu(f"v_max_f32 {vr(m[0])}, {vr(m[0])}, {vr(m[1])}", V(m[0]), V(m[0]) + V(m[1])))
    xhalf_sum(L, m[0], t1, 'max')
    L.append(valu(f"v_mul_f32 {vr(m[0])}, {sr(sC)}, {vr(m[0])}", V(m[0]), V(m[0])))
    for k in range(32):
        L.append(valu(f"v_fma_f32 {vr(sa+k)}, {vr(sa+k)}, {sr(sC)}, -{vr(m[0])}", V(sa + k), V(sa + k) + V(m[0])))
        L.append(valu(f"v_exp_f32 {vr(sa+k)}, {vr(sa+k)}", V(sa + k), V(sa + k), 'trans'))
        a = sm[k & 3]
        if k < 4:
            pass
        elif k < 8:
            L.append(valu(f"v_add_f32 {vr(a)}, {vr(sa+k-4)}, {vr(sa+k)}", V(a), V(sa + k - 4) + V(sa + k)))
        else:
            L.append(valu(f"v_add_f32 {vr(a)}, {vr(a)}, {vr(sa+k)}", V(a), V(a) + V(sa + k)))
    L.append(valu(f"v_add_f32 {vr(sm[0])}, {vr(sm[0])}, {vr(sm[1])}", V(sm[0]), V(sm[0]) + V(sm[1])))
    L.append(valu(f"v_add_f32 {vr(sm[2])}, {vr(sm[2])}, {vr(sm[3])}", V(sm[2]), V(sm[2]) + V(sm[3])))
    L.append(valu(f"v_add_f32 {vr(sm[0])}, {vr(sm[0])}, {vr(sm[2])}", V(sm[0]), V(sm[0]) + V(sm[2])))
    xhalf_sum(L, sm[0], t1)
    L.append(valu(f"v_rcp_f32 {vr(sm[0])}, {vr(sm[0])}", V(sm[0]), V(sm[0]), 'trans'))
    for j in range(16):
        L.append(valu(f"v_mul_f32 {vr(sa+2*j)}, {vr(sa+2*j)}, {vr(sm[0])}", V(sa + 2 * j), V(sa + 2 * j) + V(sm[0])))
        L.append(valu(f"v_mul_f32 {vr(sa+2*j+1)}, {vr(sa+2*j+1)}, {vr(sm[0])}", V(sa + 2 * j + 1), V(sa + 2 * j + 1) + V(sm[0])))
        L.append(pk(sa + j, sa + 2 * j, sa + 2 * j + 1))

LNU = [PB(0), R_A]
LNT = [list(range(PB(3), PB(3) + 8)), list(range(PB(3) + 8, PB(3) + 16))]
VACC = [PB(1), PB(3)]; VPK = [R_A + 32, R_A + 40]; OB = [R_A, R_A + 16]

LIN = [(0, 0), (1, 0), (0, FPAD + 512), (0, 2 * FPAD), (1, 2 * FPAD), (0, 3 * FPAD + 512)]
def lin_lds(k):
    p, off = LIN[k]
    return (vLA1 if p else vLA0), off

def phase(temporal):
    L = []
    mtM = 0 if temporal else 2; mtU = mtM + 1
    for u in range(2): LN(L, u, LNU[u], LNT[u])
    pool = [PB(1), PB(2), PB(3)]
    k = 0
    for u in range(2):
        for i in range(3):
            Qstage(L, mtM, u, i, pool[k % 3]); k += 1
        if temporal:
            Sstage(L, u, u, PB(2 * u))
    if temporal:
        for u in range(2):
            softmax_t(L, PB(2 * u), list(range(QP(u), QP(u) + 24)))
    else:
        for qu in range(2):
            for ku in range(2):
                Sstage(L, ku, qu, PB(2 * qu + ku))
        for qu in range(2):
            softmax_s(L, PB(2 * qu), list(range(QP(qu), QP(qu) + 24)))
    for i in range(3):
        for u in range(2):
            Vstage(L, mtU, u, i, VACC[u], VPK[u])
        for u in range(2):
            unpack_mfma(L, u, i, OB[u])
            if temporal:
                for kk in range(2):
                    L.append(mfma(OB[u], VPK[u] + 4 * kk, PB(2 * u) + 4 * kk, OB[u]))
            else:
                for ku in range(2):
                    for kk in range(2):
                        L.append(mfma(OB[u], VPK[ku] + 4 * kk, PB(2 * u) + 8 * ku + 4 * kk, OB[u]))
            Opack(L, u, i, OB[u])
    return L

def xload_insts():
    L = []
    for u in range(2):
        for k in range(6):
            va = vGT1 if LIN[k][0] else vFR
            L.append(I(f"buffer_load_dwordx4 {vr(H(u)+4*k,4)}, {vr(va)}, {sr(sXS,4)}, {sr(sLD+6*u+k)} offen",
                       'vld', w=V(H(u) + 4 * k, 4) + [('ord', 0)], r=V(va)))
    return L

nstamp = [0]
def stamp(real=False):
    if 'stamp' not in FL: return
    R("s_memrealtime s[94:95]" if real else "s_memtime s[94:95]")
    R("s_mov_b32 m0, s92")
    R("s_waitcnt lgkmcnt(0)")
    R("v_writelane_b32 v3, s94, m0")
    R("s_add_u32 s92, s92, 1")
def stamp_flush():
    if 'stamp' not in FL: return
    R("s_cmp_eq_u32 s2, 3")
    R("s_cbranch_scc0 L_end")
    R(f"v_lshlrev_b32 v15, 2, {vr(vLANE)}")
    R(f"s_lshl_b32 s93, {sr(sWV)}, 6")
    R("v_add_u32 v15, s93, v15")
    R("s_mov_b64 exec, 0xffff")
    R(f"global_store_dword v15, v3, {sr(sDBG,2)}")
    R("s_mov_b64 exec, -1")

hdr = f"""; fused video-swin block: temporal attention + 8x8 window attention (generated by gen/gen.py)
; @launch grid=(256,1,1) block=(512,1,1) lds={LDS_TOTAL}
.amdgcn_target "amdgcn-amd-amdhsa--gfx950"
.text
.globl {NAME}_kernel
.p2align 8
.type {NAME}_kernel,@function
{NAME}_kernel:"""
E.lines.append(hdr)
R("s_cmp_ge_u32 s2, 256")
R("s_cbranch_scc1 L_end")
R(f"s_load_dwordx8 {sr(sKA,8)}, s[0:1], 0")
R(f"s_load_dwordx4 {sr(sKA+8,4)}, s[0:1], 32")
if 'stamp' in FL: R(f"s_load_dwordx2 {sr(sDBG,2)}, s[0:1], 48")
R(f"v_and_b32 {vr(vLANE)}, 63, v0")
R(f"v_lshrrev_b32 {vr(vTMP)}, 6, v0")
R("s_nop 0")
R(f"v_readfirstlane_b32 {sr(sWV)}, {vr(vTMP)}")
R("s_nop 3")
R(f"s_lshr_b32 {sr(sG)}, {sr(sWV)}, 2")
R(f"s_and_b32 {sr(sW)}, {sr(sWV)}, 3")
R(f"v_lshrrev_b32 v24, 5, {vr(vLANE)}")
R(f"v_and_b32 v25, 31, {vr(vLANE)}")
R("v_bfe_u32 v29, v25, 2, 1")
R("v_and_b32 v30, 3, v25")
R("v_lshrrev_b32 v31, 3, v25")
R("v_lshl_add_u32 v30, v31, 2, v30")
R("v_mad_u32_u24 v26, v29, 48, v30")
R("s_movk_i32 s3, 576")
R("v_mul_u32_u24 v27, s3, v26")
R("v_lshl_add_u32 v27, v24, 4, v27")
R("v_lshrrev_b32 v31, 3, v30")
R("v_lshlrev_b32 v31, 4, v31")
R("v_lshl_add_u32 v31, v29, 3, v31")
R("v_and_b32 v28, 7, v30")
R("v_add_u32 v31, v31, v28")
R("s_movk_i32 s3, 192")
R("v_mul_u32_u24 v28, s3, v31")
R("s_movk_i32 s3, 96")
R("v_mad_u32_u24 v28, v24, s3, v28")
R("v_and_b32 v31, 1, v30")
R("v_lshlrev_b32 v31, 4, v31")
R("s_movk_i32 s3, 0x3f80")
R("v_lshlrev_b32 v31, v31, s3")
R("v_cmp_eq_u32 vcc, v29, v24")
R("s_nop 1")
R("v_cndmask_b32 v31, 0, v31, vcc")
R("v_lshrrev_b32 v30, 1, v30")
for q in range(8):
    R(f"v_cmp_eq_u32 vcc, {q}, v30")
    R("s_nop 1")
    R(f"v_cndmask_b32 {vr(R_ID+q)}, 0, v31, vcc")
R(f"s_lshr_b32 {sr(sMT)}, {sr(sWV)}, 1")
R(f"s_and_b32 {sr(sHF)}, {sr(sWV)}, 1")
R("s_waitcnt lgkmcnt(0)")
R(f"s_cmp_ge_u32 {sr(sMT)}, 2")
R(f"s_cselect_b32 {sr(sWQ)}, {sr(sKA+6)}, {sr(sKA+2)}")
R(f"s_cselect_b32 {sr(sWQ+1)}, {sr(sKA+7)}, {sr(sKA+3)}")
R(f"s_cselect_b32 {sr(sWO)}, {sr(sKA+8)}, {sr(sKA+4)}")
R(f"s_cselect_b32 {sr(sWO+1)}, {sr(sKA+9)}, {sr(sKA+5)}")
R(f"s_and_b32 {sr(sWQ+1)}, {sr(sWQ+1)}, 0xffff")
R(f"s_and_b32 {sr(sWO+1)}, {sr(sWO+1)}, 0xffff")
R(f"s_mov_b32 {sr(sWQ+2)}, 55296")
R(f"s_mov_b32 {sr(sWQ+3)}, 0x00020000")
R(f"s_mov_b32 {sr(sWO+2)}, 18432")
R(f"s_mov_b32 {sr(sWO+3)}, 0x00020000")
PA = 120; PBv = 192; PACC = 24; PPK = 240
R(f"s_and_b32 {sr(sT0)}, {sr(sMT)}, 1")
R(f"s_mul_i32 {sr(sT1)}, {sr(sT0)}, 384")
R(f"s_mul_i32 {sr(sT3)}, {sr(sHF)}, {2*9216}")
R(f"s_sub_u32 {sr(sT4)}, {2*9216}, {sr(sT3)}")
for slot in range(3):
    if slot == 0: R(f"s_add_u32 {sr(sT2)}, {sr(sT1)}, {sr(sT3)}")
    elif slot == 1: R(f"s_add_u32 {sr(sT2)}, {sr(sT1)}, 9216")
    else: R(f"s_add_u32 {sr(sT2)}, {sr(sT1)}, {sr(sT4)}")
    for s in range(6):
        R(f"buffer_load_dwordx4 {vr(PA+(slot*6+s)*4,4)}, v27, {sr(sWQ,4)}, {sr(sT2)} offen offset:{32*s}")
R(f"s_cmp_eq_u32 {sr(sT0)}, 1")
R("s_cbranch_scc1 L_prepU")
for b in range(2):
    if b == 0: R(f"s_add_u32 {sr(sT2)}, {sr(sT3)}, 192")
    else: R(f"s_mov_b32 {sr(sT2)}, {9216+192}")
    for s in range(6):
        R(f"buffer_load_dwordx4 {vr(PBv+(b*6+s)*4,4)}, v27, {sr(sWQ,4)}, {sr(sT2)} offen offset:{32*s}")
R("s_branch L_prepL")
E.label("L_prepU")
for b in range(2):
    for ct in range(3):
        if b == 0:
            R(f"s_lshl_b32 {sr(sT2)}, {sr(sHF)}, 6")
            R(f"s_add_u32 {sr(sT2)}, {sr(sT2)}, {ct*6144}")
        else:
            R(f"s_mov_b32 {sr(sT2)}, {32+ct*6144}")
        for kk in range(2):
            R(f"buffer_load_dwordx4 {vr(PBv+(b*6+2*ct+kk)*4,4)}, v28, {sr(sWO,4)}, {sr(sT2)} offen offset:{16*kk}")
E.label("L_prepL")

R(f"s_mov_b32 {sr(sC)}, 0x{f32bits(96**-0.5 * math.log2(math.e)):08x}")
R(f"s_mov_b32 {sr(sI96)}, 0x{f32bits(1/96):08x}")
R(f"s_mov_b32 {sr(sEPS)}, 0x{f32bits(1e-5):08x}")
R(f"s_mov_b32 {sr(sHI)}, 0xffff0000")
for Rr in range(4):
    R(f"s_mov_b32 {sr(sMR+2*Rr)}, 0x{0xFF << (8*Rr):08x}")
    R(f"s_mov_b32 {sr(sMR+2*Rr+1)}, 0x{0xFF << (8*Rr):08x}")
R(f"s_mov_b32 {sr(sVH)}, 0x0f0f0f0f")
R(f"s_mov_b32 {sr(sVH+1)}, 0xf0f0f0f0")
R(f"s_lshl_b32 {sr(sT0)}, 0x11111111, {sr(sW)}")
R(f"s_not_b32 {sr(sEX)}, {sr(sT0)}")
R(f"s_mov_b32 {sr(sEX+1)}, {sr(sEX)}")
R(f"v_mov_b32 {vr(vONE)}, 1")
R(f"v_lshlrev_b32 {vr(vFR)}, 4, {vr(vLANE)}")
R(f"v_add_u32 {vr(vFR2)}, 36864, {vr(vFR)}")
R("v_cmp_eq_u32 vcc, 1, v24")
R(f"v_mov_b32 v29, 1024")
R(f"v_mov_b32 v30, {FRAME-512}")
R(f"v_cndmask_b32 v30, v29, v30, vcc")
R(f"v_add_u32 {vr(vGT1)}, {vr(vFR)}, v30")
R(f"v_mov_b32 v30, {2*ROW-512}")
R(f"v_cndmask_b32 v30, v29, v30, vcc")
R(f"v_add_u32 {vr(vGS1)}, {vr(vFR)}, v30")
R(f"v_mov_b32 v30, {FPAD-512}")
R(f"v_cndmask_b32 v30, v29, v30, vcc")
R(f"s_mul_i32 {sr(sT0)}, {sr(sG)}, {LDS_X}")
R(f"s_add_u32 {sr(sT0)}, {sr(sT0)}, {LDS_W}")
R(f"s_mul_i32 {sr(sT1)}, {sr(sW)}, 9216")
R(f"s_add_u32 {sr(sT1)}, {sr(sT1)}, {sr(sT0)}")
R(f"v_add_u32 {vr(vLA0)}, {sr(sT1)}, {vr(vFR)}")
R(f"v_add_u32 {vr(vLA1)}, {vr(vLA0)}, v30")
R(f"v_bfe_u32 v25, {vr(vLANE)}, 2, 3")
R(f"v_and_b32 v26, 3, {vr(vLANE)}")
R("v_mul_u32_u24 v29, 96, v24")
R("s_movk_i32 s3, 192")
R("v_mad_u32_u24 v29, v25, s3, v29")
R(f"s_movk_i32 s3, {FPAD}")
R("v_mad_u32_u24 v29, v26, s3, v29")
R(f"v_add_u32 {vr(vLF)}, {sr(sT1)}, v29")
R("s_movk_i32 s3, 384")
R("v_mul_u32_u24 v29, s3, v24")
R("v_mad_u32_u24 v29, v25, 48, v29")
R(f"v_add_u32 v29, {sr(sT0)}, v29")
R(f"s_sub_u32 {sr(sT2)}, {sr(sW)}, 1")
R(f"v_sub_u32 v30, {sr(sT2)}, v26")
R("v_and_b32 v30, 3, v30")
R("v_lshl_add_u32 v30, v30, 4, v29")
R("s_movk_i32 s3, 9216")
R(f"v_mad_u32_u24 {vr(vXW)}, v26, s3, v30")
R(f"s_add_u32 {sr(sT2)}, {sr(sW)}, 1")
R(f"v_subrev_u32 v30, {sr(sT2)}, v26")
R("v_and_b32 v30, 3, v30")
R("v_lshl_add_u32 v30, v30, 4, v29")
R(f"s_mul_i32 {sr(sT2)}, {sr(sW)}, 9216")
R(f"v_add_u32 {vr(vXR)}, {sr(sT2)}, v30")
R(f"s_lshl_b32 {sr(sT2)}, {sr(sG)}, 3")
R(f"s_add_u32 {sr(sT2)}, {sr(sT2)}, {LDS_CNT}")
R(f"v_mov_b32 {vr(vCNT)}, {sr(sT2)}")
R(f"s_mov_b32 {sr(sXS)}, {sr(sKA)}")
R(f"s_and_b32 {sr(sXS+1)}, {sr(sKA+1)}, 0xffff")
R(f"s_mov_b32 {sr(sXS+2)}, {XBYTES}")
R(f"s_mov_b32 {sr(sXS+3)}, 0x00020000")
R(f"s_mov_b32 {sr(sOS)}, {sr(sKA+10)}")
R(f"s_and_b32 {sr(sOS+1)}, {sr(sKA+11)}, 0xffff")
R(f"s_mov_b32 {sr(sOS+2)}, {XBYTES}")
R(f"s_mov_b32 {sr(sOS+3)}, 0x00020000")
R(f"s_lshl_b32 {sr(sIDX)}, {sr(sG)}, 8")
R(f"s_add_u32 {sr(sIDX)}, {sr(sIDX)}, s2")
R(f"s_mov_b32 {sr(sIT)}, 0")
if 'stamp' in FL:
    R("v_mov_b32 v3, 0")
    R("s_mov_b32 s92, 15")
    stamp(True)
    R("s_mov_b32 s92, 0")
    stamp()

KOFF_T = [0, 0, FRAME + 512, 2 * FRAME, 2 * FRAME, 3 * FRAME + 512]
KOFF_S = [0, 0, 2 * ROW + 512, 4 * ROW, 4 * ROW, 6 * ROW + 512]
def window_base(idx_s, dst):
    R(f"s_mul_hi_u32 {sr(sT0)}, {sr(idx_s)}, {(2**32 + 27)//28}")
    R(f"s_mul_i32 {sr(sT1)}, {sr(sT0)}, 28")
    R(f"s_sub_u32 {sr(sT1)}, {sr(idx_s)}, {sr(sT1)}")
    R(f"s_mul_i32 {sr(sT0)}, {sr(sT0)}, {8*ROW}")
    R(f"s_mul_i32 {sr(sT1)}, {sr(sT1)}, {8*PIX}")
    R(f"s_add_u32 {sr(dst)}, {sr(sT0)}, {sr(sT1)}")
def load_offsets(base):
    R(f"s_mul_i32 {sr(sT1)}, {sr(sW)}, {2*ROW}")
    R(f"s_add_u32 {sr(sT1)}, {sr(sT1)}, {sr(base)}")
    for u in range(2):
        for k in range(6):
            R(f"s_add_u32 {sr(sLD+6*u+k)}, {sr(sT1)}, {u*ROW + KOFF_T[k]}")
def store_offsets(base):
    R(f"s_mul_i32 {sr(sT1)}, {sr(sW)}, {FRAME}")
    R(f"s_add_u32 {sr(sT1)}, {sr(sT1)}, {sr(base)}")
    for u in range(2):
        for k in range(6):
            R(f"s_add_u32 {sr(sST+6*u+k)}, {sr(sT1)}, {u*ROW + KOFF_S[k]}")

window_base(sIDX, sNB)
load_offsets(sNB)
if 'noload' not in FL:
    for x in xload_insts(): R(x.text)
    R("s_waitcnt vmcnt(12)")
else:
    R("s_waitcnt vmcnt(0)")
R(f"s_and_b32 {sr(sT0)}, {sr(sMT)}, 1")
R(f"s_cmp_eq_u32 {sr(sT0)}, 0")
R("s_cbranch_scc1 L_prepM")
E.hist = []
for b in range(2):
    for ct in range(3):
        q = PBv + (b * 6 + 2 * ct) * 4
        acc = PACC + 16 * ct
        E.emit(mfma(acc, q, R_ID, None)); E.emit(mfma(acc, q + 4, R_ID + 4, acc))
    for ct in range(3):
        q = PBv + (b * 6 + 2 * ct) * 4
        acc = PACC + 16 * ct
        for j in range(8): E.emit(pk(q + j, acc + 2 * j, acc + 2 * j + 1))
E.label("L_prepM")
E.fence()
R(f"s_mul_i32 {sr(sT0)}, {sr(sMT)}, 18432")
R(f"s_mul_i32 {sr(sT1)}, {sr(sHF)}, {2*6144}")
R(f"s_add_u32 {sr(sT1)}, {sr(sT1)}, {sr(sT0)}")
R(f"s_add_u32 {sr(sT2)}, {sr(sT0)}, 6144")
R(f"s_lshl_b32 {sr(sT3)}, {sr(sHF)}, 12")
R(f"s_sub_u32 {sr(sT4)}, 4096, {sr(sT3)}")
tiles = [(0, 0), (1, 0), (2, 0), (0, 1), (1, 1)]
for n, (slot, b) in enumerate(tiles):
    acc = PACC + 16 * (n % 3)
    for s in range(6):
        E.emit(mfma(acc, PA + (slot * 6 + s) * 4, PBv + (b * 6 + s) * 4, None if s == 0 else acc))
    if n >= 1:
        pass
    bs = sT1 if b == 0 else sT2
    if slot == 0: R(f"s_add_u32 s3, {sr(bs)}, {sr(sT3)}")
    elif slot == 1: R(f"s_add_u32 s3, {sr(bs)}, 2048")
    else: R(f"s_add_u32 s3, {sr(bs)}, {sr(sT4)}")
    pp = PPK + 8 * (n % 2)
    E.emit(valu(f"v_add_u32 v14, s3, {vr(vFR)}", V(14), V(vFR)))
    for j in range(8): E.emit(pk(pp + j, acc + 2 * j, acc + 2 * j + 1))
    for hh in range(2):
        E.emit(I(f"ds_write_b128 v14, {vr(pp+4*hh,4)} offset:{hh*1024}", 'dsw', r=V(14) + V(pp + 4 * hh, 4)))
R(f"v_mov_b32 v14, 0")
R(f"v_mov_b32 v15, 0")
R(f"ds_write_b64 {vr(vCNT)}, v[14:15]")
R("s_waitcnt lgkmcnt(0)")
R("s_barrier")
E.lgkm = []
R("s_waitcnt vmcnt(0)")
E.fence()

def spin(label, off, tgt):
    E.label(label)
    R(f"ds_read_b32 {vr(vTMP)}, {vr(vCNT)} offset:{off}")
    R("s_waitcnt lgkmcnt(0)")
    R(f"v_readfirstlane_b32 {sr(sT0)}, {vr(vTMP)}")
    R("s_nop 3")
    R(f"s_cmp_ge_u32 {sr(sT0)}, {sr(tgt)}")
    R(f"s_cbranch_scc1 {label}_go")
    R("s_sleep 1")
    R(f"s_branch {label}")
    E.label(label + "_go")
def signal(off):
    R("s_mov_b64 exec, 1")
    R(f"ds_add_u32 {vr(vCNT)}, {vr(vONE)} offset:{off}")
    R("s_mov_b64 exec, -1")

if 'preponly' in FL: R("s_branch L_end")
if 'solo' in FL:
    R(f"s_cmp_eq_u32 {sr(sG)}, 1")
    R("s_cbranch_scc1 L_end")
E.label("L_loop")
stamp()
R("s_waitcnt vmcnt(12)" if 'nostore' not in FL else "s_waitcnt vmcnt(0)")
stamp()
E.vm = []; E.lgkm = []
store_offsets(sNB)
R(f"s_add_u32 {sr(sIDX)}, {sr(sIDX)}, 512")
window_base(sIDX, sNB)
R(f"s_cmp_ge_u32 {sr(sIDX)}, 784")
R(f"s_cselect_b32 {sr(sT2)}, 0x40000000, {sr(sNB)}")
load_offsets(sT2)
for u in range(2):
    for k in range(6):
        a, off = lin_lds(k)
        R(f"ds_write_b128 {vr(a)}, {vr(H(u)+4*k,4)} offset:{off}")
    for s in range(6):
        R(f"ds_read_b128 {vr(X(u)+4*s,4)}, {vr(vLF)} offset:{16*s}")
R("s_waitcnt lgkmcnt(0)")
signal(4)
R(f"s_add_u32 {sr(sIT)}, {sr(sIT)}, 1")
R(f"s_lshl_b32 {sr(sTGT)}, {sr(sIT)}, 2")
cyc_t = E.region(phase(True), SCHED)
E.fence()
stamp()
R("s_waitcnt lgkmcnt(0)")
spin("L_spinR", 4, sTGT)
R(f"s_mov_b64 exec, {sr(sEX,2)}")
for u in range(2):
    for s in range(6):
        R(f"ds_write_b128 {vr(vXW)}, {vr(X(u)+4*s,4)} offset:{u*4608+s*768}")
R("s_mov_b64 exec, -1")
R("s_waitcnt lgkmcnt(0)")
signal(0)
spin("L_spinW", 0, sTGT)
R(f"s_mov_b64 exec, {sr(sEX,2)}")
for u in range(2):
    for s in range(6):
        R(f"ds_read_b128 {vr(X(u)+4*s,4)}, {vr(vXR)} offset:{u*4608+s*768}")
R("s_mov_b64 exec, -1")
R("s_waitcnt lgkmcnt(0)")
stamp()
E.lgkm = []
Ls = phase(False)
if 'noload' not in FL: Ls += xload_insts()
for u in range(2 if 'nostore' not in FL else 0):
    for s in range(6):
        Ls.append(I(f"ds_write_b128 {vr(vLF)}, {vr(X(u)+4*s,4)} offset:{16*s}", 'dsw',
                    w=[('lds', 0)], r=V(vLF) + V(X(u) + 4 * s, 4)))
    for k in range(6):
        a, off = lin_lds(k)
        Ls.append(I(f"ds_read_b128 {vr(X(u)+4*k,4)}, {vr(a)} offset:{off}", 'dsr',
                    w=V(X(u) + 4 * k, 4), r=V(a) + [('lds', 0)]))
    for k in range(6):
        va = vGS1 if LIN[k][0] else vFR
        Ls.append(I(f"buffer_store_dwordx4 {vr(X(u)+4*k,4)}, {vr(va)}, {sr(sOS,4)}, {sr(sST+6*u+k)} offen",
                    'vst', r=V(X(u) + 4 * k, 4) + V(va) + [('ord', 0)]))
cyc_s = E.region(Ls, SCHED)
E.fence()
R(f"s_cmp_lt_u32 {sr(sIDX)}, 784")
R("s_cbranch_scc1 L_loop")
stamp()
R("s_mov_b32 s92, 10") if 'stamp' in FL else None
stamp(True)
stamp_flush()
E.label("L_end")
R("s_endpgm")
E.lines.append(f""".section .rodata,"a"
.p2align 6
.amdhsa_kernel {NAME}_kernel
  .amdhsa_next_free_vgpr 256
  .amdhsa_next_free_sgpr 100
  .amdhsa_accum_offset 256
  .amdhsa_group_segment_fixed_size 0
  .amdhsa_kernarg_size 64
  .amdhsa_user_sgpr_count 2
  .amdhsa_user_sgpr_kernarg_segment_ptr 1
  .amdhsa_system_sgpr_workgroup_id_x 1
.end_amdhsa_kernel""")
out = sys.argv[1] if len(sys.argv) > 1 and sys.argv[1].endswith('.s') else f"cdna_kernels/{NAME}.s"
open(out, 'w').write("\n".join(E.lines) + "\n")
print("est cycles T,S:", cyc_t, cyc_s, "lines", len(E.lines), file=sys.stderr)
```
